```python
import torch

def _softmax(x, axis=-1):
    return torch.softmax(x, dim=axis)

def _gelu(x):
    return torch.nn.functional.gelu(x, approximate='tanh')

def _silu(x):
    return torch.nn.functional.silu(x)

def _sigmoid(x):
    return torch.sigmoid(x)

def _layernorm(x, axis=-1, eps=1e-05):
    m = x.mean(dim=axis, keepdim=True)
    v = x.var(dim=axis, keepdim=True, unbiased=False)
    return (x - m) / torch.sqrt(v + eps)

def _scatter_add(tgt, idx, src, axis=0):
    return tgt.clone().index_add_(axis, idx, src)

def _segment_sum(src, seg, n):
    out = torch.zeros((n,) + src.shape[1:], dtype=src.dtype)
    return out.index_add_(0, seg, src)

def _pad(x, pw):
    flat = tuple((v for pair in reversed(pw) for v in pair))
    return torch.nn.functional.pad(x, flat)
kernel_name = 'adaLN_cond__mha_block__geglu_ffn__prompt'

def setup_inputs():

    _w = lambda a: (lambda t: t.to(torch.bfloat16) if t.is_floating_point() else t)(torch.as_tensor(a))

    def _A_setup():
        B, S, D, H = (1, 2048, 640, 32)
        return {'x': _w((lambda *s: torch.randn(*s, dtype=torch.bfloat16) * 0.05)(B, S, D)), 'wqkv': _w((lambda *s: torch.randn(*s, dtype=torch.bfloat16) * 0.05)(D, 3 * D)), 'wo': _w((lambda *s: torch.randn(*s, dtype=torch.bfloat16) * 0.05)(D, D))}
    _A_in = _A_setup()

    def _B_setup():
        B, S, D, F = (1, 2048, 640, 1536)
        return {'x': _w((lambda *s: torch.randn(*s, dtype=torch.bfloat16) * 0.05)(B, S, D)), 'w_gate': _w((lambda *s: torch.randn(*s, dtype=torch.bfloat16) * 0.05)(D, F)), 'w_up': _w((lambda *s: torch.randn(*s, dtype=torch.bfloat16) * 0.05)(D, F)), 'w_down': _w((lambda *s: torch.randn(*s, dtype=torch.bfloat16) * 0.05)(F, D))}
    _B_in = _B_setup()
    return {'A_x': _A_in['x'], 'A_wqkv': _A_in['wqkv'], 'A_wo': _A_in['wo'], 'B_x': _B_in['x'], 'B_w_gate': _B_in['w_gate'], 'B_w_up': _B_in['w_up'], 'B_w_down': _B_in['w_down'], 'c': _w((lambda *s: torch.randn(*s, dtype=torch.bfloat16) * 0.1)(1, 640) * 8.0), 'w_mod': _w((lambda *s: torch.randn(*s, dtype=torch.bfloat16) * 0.1)(640, 6 * 640) * 640 ** (-0.5) * 8.0)}

def reference(A_x, A_wqkv, A_wo, B_x, B_w_gate, B_w_up, B_w_down, c, w_mod):

    def _A_ref(x, wqkv, wo):
        B, S, D = x.shape
        H = 32
        Dh = D // H
        qkv = (lambda x, *d: x.permute(*d))((x @ wqkv).reshape(B, S, 3, H, Dh), 2, 0, 3, 1, 4)
        q, k, v = (qkv[0], qkv[1], qkv[2])
        scores = torch.einsum('bhqd,bhkd->bhqk', q, k) * Dh ** (-0.5)
        p = _softmax(scores, axis=-1)
        o = torch.einsum('bhqk,bhkd->bhqd', p, v)
        return (lambda x, *d: x.permute(*d))(o, 0, 2, 1, 3).reshape(B, S, D) @ wo

    def _B_ref(x, w_gate, w_up, w_down):
        return _gelu(x @ w_gate) * (x @ w_up) @ w_down
    x = A_x
    mod = (_silu(c) @ w_mod).reshape(c.shape[0], 6, 1, -1)
    sa, ca, ga, sb, cb, gb = (mod[:, 0].clone(), mod[:, 1].clone(), mod[:, 2].clone(), mod[:, 3].clone(), mod[:, 4].clone(), mod[:, 5].clone())
    h = _layernorm(x, axis=-1) * (1 + ca) + sa
    x = x + ga * _A_ref(h, A_wqkv, A_wo)
    h = _layernorm(x, axis=-1) * (1 + cb) + sb
    x = x + gb * _B_ref(h, B_w_gate, B_w_up, B_w_down)
    return x
```

```python
import math
S, D, H, DH, F = 2048, 640, 32, 20, 1536

KA_X, KA_WQKV, KA_WO, KA_BX, KA_WG, KA_WU, KA_WD, KA_C, KA_WMOD, KA_OUT, KA_DBG, KA_WS = [8 * i for i in range(12)]

WS = {}
_off = 0
def _alloc(name, n):
    global _off
    WS[name] = _off
    _off += (n + 4095) // 4096 * 4096
_alloc("XH", S * D * 2)
_alloc("WQ", D * 3 * D * 2)
_alloc("V1P", 40 * 1920 * 4)
_alloc("MODF", 2560 * 4)
_alloc("QI", S * D * 2)
_alloc("KV", S * D * 4)
_alloc("OI", S * D * 2)
_alloc("WO", D * D * 2)
_alloc("WD", F * D * 2)
_alloc("WGU", D * 2 * F * 2)
_alloc("X1", S * D * 2)
_alloc("X1G", S * D * 2)
_alloc("ST2", S * 8 * 2 * 4)
_alloc("UV2", 2 * 3072 * 4)
_alloc("ACT", S * F * 2)
WS_USED = _off

LOG2E = 1.4426950408889634
def f32bits(x):
    import struct
    return struct.unpack("<I", struct.pack("<f", x))[0]
def hexf(x): return "0x%08x" % f32bits(x)

class Asm:
    def __init__(self):
        self.lines = []
        self.nlab = 0
    def __call__(self, s=""):
        for l in s.split("\n"):
            l = l.strip()
            if not l: continue
            if l.endswith(":"): self.lines.append(l)
            else: self.lines.append("    " + l)
    def label(self, base):
        self.nlab += 1
        return "%s_%d" % (base, self.nlab)

def vr(a, n=1): return "v%d" % a if n == 1 else "v[%d:%d]" % (a, a + n - 1)
def sr(a, n=1): return "s%d" % a if n == 1 else "s[%d:%d]" % (a, a + n - 1)

def srd(a, dst, ptr, size):
    a(f"""s_mov_b32 s{dst}, s{ptr}
s_mov_b32 s{dst+1}, s{ptr+1}
s_mov_b32 s{dst+2}, {size}
s_mov_b32 s{dst+3}, 0x00020000""")

def kernel_head(name):
    return [".text", ".globl %s" % name, ".p2align 8", ".type %s,@function" % name, "%s:" % name]

def kernel_desc(name, vgprs, sgprs=96):
    v = (vgprs + 7) // 8 * 8
    return [".section .rodata,\"a\"", ".p2align 6", ".amdhsa_kernel %s" % name,
            "  .amdhsa_next_free_vgpr %d" % v, "  .amdhsa_next_free_sgpr %d" % sgprs,
            "  .amdhsa_accum_offset %d" % v, "  .amdhsa_group_segment_fixed_size 0",
            "  .amdhsa_kernarg_size 96", "  .amdhsa_user_sgpr_count 2",
            "  .amdhsa_user_sgpr_kernarg_segment_ptr 1", "  .amdhsa_system_sgpr_workgroup_id_x 1",
            ".end_amdhsa_kernel"]
```

```python
from common import *

def producer_loop(a, T, NS, per_stage, issue, pre_wait=None, after_first=None):
    first = min(NS, T)
    for s in range(first): issue(s)
    issued = first
    if pre_wait: pre_wait(first * per_stage)
    for s in range(T):
        a(f"s_waitcnt vmcnt({(issued - 1 - s) * per_stage})")
        a("s_barrier")
        if s >= 1 and s - 1 + NS < T:
            issue(s - 1 + NS); issued += 1
        if s == 0 and after_first: after_first()

def consumer_loop(a, T, SUB, reads, mfmas, nreads, mid=None):
    N = T * SUB
    a("s_barrier")
    reads(0, 0)
    for n in range(N):
        nxt = n + 1
        if nxt < N:
            if nxt % SUB == 0:
                a("s_waitcnt lgkmcnt(0)")
                a("s_barrier")
                reads(nxt, nxt % 2)
            else:
                reads(nxt, nxt % 2)
                a(f"s_waitcnt lgkmcnt({nreads})")
        else:
            a("s_waitcnt lgkmcnt(0)")
        mfmas(n, n % 2)
        if mid: mid(n)
```

```python
import re

TRANS = ("v_exp_", "v_log_", "v_rcp_", "v_rsq_", "v_sqrt_", "v_sin_", "v_cos_")

def regs_of(tok):
    tok = tok.strip()
    neg = tok.lstrip("-").replace("abs(", "").replace("|", "").rstrip(")")
    m = re.fullmatch(r"([vsa])(\d+)", neg)
    if m:
        return [(m.group(1), int(m.group(2)))]
    m = re.fullmatch(r"([vsa])\[(\d+):(\d+)\]", neg)
    if m:
        return [(m.group(1), i) for i in range(int(m.group(2)), int(m.group(3)) + 1)]
    if neg == "vcc":
        return [("s", 106), ("s", 107)]
    if neg == "vcc_lo": return [("s", 106)]
    if neg == "vcc_hi": return [("s", 107)]
    if neg == "exec":
        return [("s", 126), ("s", 127)]
    if neg == "m0":
        return [("s", 124)]
    return []

class Ins:
    __slots__ = ("text", "op", "kind", "w", "r", "srcc", "srcab", "passes", "nop", "wide_store_data", "lds_dma", "is_trans", "dpp", "perm", "rl", "vmem_sregs", "branch", "label")

def split_ops(s):
    out, depth, cur = [], 0, ""
    for ch in s:
        if ch in "[(": depth += 1
        if ch in "])": depth -= 1
        if ch == "," and depth == 0:
            out.append(cur); cur = ""
        else:
            cur += ch
    if cur.strip(): out.append(cur)
    return [o.strip() for o in out]

def parse(line):
    t = line.split(";")[0].strip()
    i = Ins()
    i.text = line; i.w = []; i.r = []; i.srcc = []; i.srcab = []; i.passes = 0; i.nop = 0
    i.wide_store_data = []; i.lds_dma = False; i.is_trans = False; i.dpp = False; i.perm = False; i.rl = False
    i.vmem_sregs = []; i.branch = None; i.label = None; i.op = ""; i.kind = "none"
    if not t or t.startswith("."):
        return i
    if t.endswith(":"):
        i.kind = "label"; i.label = t[:-1]; return i
    parts = t.split(None, 1)
    op = parts[0]; i.op = op
    rest = parts[1] if len(parts) > 1 else ""
    ops = split_ops(rest)
    if ops:
        last = ops[-1].split()
        mods = last[1:]
        ops[-1] = last[0] if last else ""
    else:
        mods = []
    modtxt = " ".join(mods)
    R = lambda k: regs_of(ops[k]) if k < len(ops) else []
    if op == "s_nop":
        i.kind = "salu"; i.nop = int(ops[0], 0) + 1; return i
    if op.startswith("s_cbranch") or op == "s_branch":
        i.kind = "salu"; i.branch = ops[0]; return i
    if op.startswith("s_"):
        i.kind = "salu"
        if op.startswith(("s_cmp", "s_waitcnt", "s_barrier", "s_endpgm", "s_setprio", "s_sleep", "s_bitcmp")):
            for k in range(len(ops)): i.r += R(k)
            return i
        i.w = R(0)
        for k in range(1, len(ops)): i.r += R(k)
        if "saveexec" in op: i.w += regs_of("exec"); i.r += regs_of("exec")
        return i
    if op.startswith(("v_mfma", "v_smfmac")):
        i.kind = "mfma"
        i.w = R(0); i.srcab = R(1) + R(2); i.srcc = R(3) if op.startswith("v_mfma") else R(0)
        i.r = i.srcab + i.srcc
        i.passes = 8 if "32x32" in op else 4
        return i
    if op.startswith("v_"):
        i.kind = "valu"
        i.is_trans = op.startswith(TRANS)
        i.dpp = ("dpp" in op) or any(m.startswith(("row_", "quad_perm", "wave_")) for m in mods)
        i.perm = op.startswith("v_permlane")
        i.rl = op.startswith(("v_readlane", "v_readfirstlane", "v_writelane"))
        i.w = R(0)
        start = 1
        if "_co_" in op or op.startswith(("v_div_scale", "v_mad_u64", "v_mad_i64")):
            i.w += R(1); start = 2
        for k in range(start, len(ops)): i.r += R(k)
        if op.startswith(("v_fmac", "v_dot2c", "v_pk_fmac", "v_mac", "v_writelane")) or "UNUSED_PRESERVE" in modtxt:
            i.r += R(0)
        if i.perm and "swap" in op:
            i.r += R(0); i.w += R(1)
        if op.startswith("v_cmpx"): i.w += regs_of("exec")
        if op.startswith("v_cndmask") and len(ops) == 3: i.r += regs_of("vcc")
        if op.startswith(("v_addc", "v_subb")) and len(ops) >= 5: pass
        return i
    if op.startswith("ds_"):
        i.kind = "ds"
        if op.startswith(("ds_read", "ds_bpermute", "ds_permute", "ds_swizzle")):
            i.w = R(0)
            for k in range(1, len(ops)): i.r += R(k)
        else:
            for k in range(len(ops)): i.r += R(k)
        return i
    if op.startswith(("buffer_", "global_")):
        i.kind = "vmem"
        lds = ("lds" in mods) or ("_lds_" in op)
        i.lds_dma = lds
        allr = []
        for k in range(len(ops)): allr += R(k)
        if op.startswith("buffer_wbl2") or op.startswith("buffer_inv"): return i
        if "load" in op and not lds:
            i.w = R(0)
            for k in range(1, len(ops)): i.r += R(k)
        elif "atomic" in op and "sc0" in mods:
            i.w = R(0); i.r = allr
        else:
            i.r = allr
            if "store" in op and ("x4" in op or "x3" in op):
                i.wide_store_data = R(0) if op.startswith("buffer_") else R(1)
        i.vmem_sregs = [r for r in i.r if r[0] == "s"]
        if lds: i.r += regs_of("m0")
        return i
    raise ValueError("unparsed: " + line)

def required(p, c):
    need = 0
    pw, cr, cw = set(p.w), set(c.r), set(c.w)
    vpw = {r for r in pw if r[0] in "va"}
    spw = {r for r in pw if r[0] == "s"}
    if p.kind == "valu":
        if c.kind == "mfma" and vpw & cr: need = max(need, 2)
        if c.kind == "mfma" and (("s", 126) in pw): need = max(need, 4)
        if p.is_trans and c.kind in ("valu",) and vpw & cr: need = max(need, 1)
        if p.is_trans and c.kind in ("vmem", "ds") and vpw & cr: need = max(need, 1)
        if c.kind == "valu" and (c.dpp or c.perm) and vpw & cr: need = max(need, 2)
        if c.kind == "valu" and c.rl and vpw & cr: need = max(need, 1)
        if c.kind == "valu" and spw & cr:
            need = max(need, 4 if c.rl else 2)
        if c.kind == "vmem" and spw & set(c.vmem_sregs): need = max(need, 5)
        if c.kind == "valu" and c.dpp and (("s", 126) in pw): need = max(need, 5)
        if c.kind == "salu" and spw & cr: need = max(need, 1)
    if p.kind == "salu":
        if ("s", 124) in pw and c.lds_dma: need = max(need, 1)
    if p.kind == "mfma":
        n = 12 if p.passes == 8 else 8
        if c.kind in ("valu", "vmem", "ds") and vpw & (cr | cw): need = max(need, n)
        if c.kind == "mfma":
            if vpw & set(c.srcab): need = max(need, n)
            ov = vpw & set(c.srcc)
            if ov and not (set(c.srcc) == vpw and c.passes == p.passes): need = max(need, 10 if p.passes == 8 else 6)
        if c.kind == "valu" and set(p.srcc) & cw and not (vpw & cw): need = max(need, 7 if p.passes == 8 else 3)
    if p.wide_store_data and set(p.wide_store_data) & cw:
        need = max(need, 2 if c.kind == "valu" else 1)
    return need

WIN = 14

def states(ins):
    if ins.kind in ("none", "label"): return 0
    return ins.nop if ins.nop else 1

def pad(lines):
    ins = [parse(l) for l in lines]
    out = []
    for c in ins:
        if c.kind not in ("none", "label") and not c.nop:
            dist = 0; need_extra = 0
            for p in reversed(out):
                if p.kind in ("none", "label"): continue
                if p.op == "s_endpgm" or p.op == "s_branch": break
                req = required(p, c)
                if req > dist: need_extra = max(need_extra, req - dist)
                dist += states(p)
                if dist >= WIN: break
            while need_extra > 0:
                k = min(need_extra, 16)
                out.append(parse("    s_nop %d" % (k - 1)))
                need_extra -= k
        out.append(c)
    check_branches(out)
    return [i.text for i in out]

def check_branches(ins):
    pos = {i.label: k for k, i in enumerate(ins) if i.kind == "label"}
    for k, b in enumerate(ins):
        if b.branch is None or b.branch not in pos: continue
        pre = []
        j = k; d = 0
        while j >= 0 and d < WIN:
            p = ins[j]
            if p.kind not in ("none", "label"):
                if j != k and p.op in ("s_endpgm", "s_branch"): break
                pre.append(p); d += states(p)
            j -= 1
        j = pos[b.branch]; dd = 0
        while j < len(ins) and dd < WIN:
            c = ins[j]
            if c.kind not in ("none", "label"):
                dist = dd
                for p in pre:
                    req = required(p, c)
                    if req > dist:
                        raise RuntimeError("hazard across branch to %s: '%s' -> '%s' needs %d has %d" % (b.branch, p.text.strip(), c.text.strip(), req, dist))
                    dist += states(p)
                dd += states(c)
                if c.op in ("s_endpgm", "s_branch"): break
            j += 1
```

```python
from common import *

NA, NC, NB = 160, 80, 64
E_WO, E_WD, E_WG, E_WU = 13, 30, 30, 30
K1_A0, K1_C0, K1_B0, K1_E0 = 0, NA, NA + NC, NA + NC + NB
K1_NWG = K1_E0 + E_WO + E_WD + E_WG + E_WU
L_SLAB, L_SVEC, L_RED, L_GS = 0, 40960, 43008, 43520
K1_LDS = 43776

def wave_lane(a, sW=4):
    a(f"""v_lshrrev_b32 v1, 6, v0
v_and_b32 v0, 63, v0
v_readfirstlane_b32 s{sW}, v1""")

def round_bf16(a, dst, src):
    a(f"""v_cvt_pk_bf16_f32 v{dst}, v{src}, v{src}
v_lshlrev_b32 v{dst}, 16, v{dst}""")

def gemv(a, with_w_loads=None):
    a(f"""v_lshlrev_b32 v3, 2, v2
buffer_load_dword v10, v3, s[20:23], 0 offen
v_lshrrev_b32 v4, 1, v0
v_mul_u32_u24 v4, 7680, v4
v_and_b32 v5, 1, v0
v_lshlrev_b32 v5, 4, v5
v_add_u32 v4, v4, v5
s_and_b32 s32, s4, 1
s_lshr_b32 s33, s4, 1
s_cmp_eq_u32 s32, 0
s_cselect_b32 s34, s30, s31
s_mul_i32 s35, s33, {5*245760}
s_add_u32 s34, s34, s35
s_mul_i32 s35, s32, 20480
s_mul_i32 s36, s33, 5120
s_add_u32 s35, s35, s36""")
    for n in range(5):
        a(f"""s_add_u32 m0, s35, {n*1024}
s_add_u32 s36, s34, {n*245760}
buffer_load_dwordx4 v4, s[8:11], s36 offen lds""")
    nw = 0
    if with_w_loads: nw = with_w_loads()
    a(f"""s_waitcnt vmcnt({5+nw})
v_lshlrev_b32 v11, 16, v10
v_and_b32 v12, 0xffff0000, v10
v_mul_f32 v13, {hexf(-LOG2E)}, v11
v_mul_f32 v14, {hexf(-LOG2E)}, v12
v_exp_f32 v13, v13
v_exp_f32 v14, v14
v_add_f32 v13, 1.0, v13
v_add_f32 v14, 1.0, v14
v_rcp_f32 v13, v13
v_rcp_f32 v14, v14
v_mul_f32 v11, v11, v13
v_mul_f32 v12, v12, v14
v_cvt_pk_bf16_f32 v11, v11, v12
v_add_u32 v3, {L_SVEC}, v3
ds_write_b32 v3, v11
v_lshrrev_b32 v5, 4, v0
v_and_b32 v6, 15, v0
v_lshlrev_b32 v7, 8, v5
v_lshl_add_u32 v7, v6, 3, v7
v_add_u32 v7, s35, v7
v_lshlrev_b32 v8, 4, v5
s_mul_i32 s36, s33, 320
s_add_u32 s36, s36, {L_SVEC}
v_add_u32 v8, s36, v8
v_mov_b32 v20, 0
v_mov_b32 v21, 0
v_mov_b32 v22, 0
v_mov_b32 v23, 0
s_waitcnt lgkmcnt(0)
s_barrier
s_waitcnt vmcnt({nw})""")
    for n in range(5):
        a(f"""ds_read_b64_tr_b16 v[{24+8*n}:{25+8*n}], v7 offset:{n*1024}
ds_read_b64_tr_b16 v[{26+8*n}:{27+8*n}], v7 offset:{n*1024+128}
ds_read_b128 v[{28+8*n}:{31+8*n}], v8 offset:{n*64}""")
    for n in range(5):
        a(f"""s_waitcnt lgkmcnt({3*(4-n)})
v_mfma_f32_16x16x32_bf16 v[20:23], v[{28+8*n}:{31+8*n}], v[{24+8*n}:{27+8*n}], v[20:23]""")
    a(f"""s_lshl_b32 s36, s4, 6
s_add_u32 s36, s36, {L_RED}
v_lshlrev_b32 v9, 2, v6
v_add_u32 v9, s36, v9
ds_write_b32 v9, v20
s_waitcnt lgkmcnt(0)
s_barrier
v_and_b32 v9, 31, v2
v_lshlrev_b32 v9, 2, v9
v_add_u32 v9, {L_RED}, v9
ds_read_b32 v20, v9
ds_read_b32 v21, v9 offset:128
ds_read_b32 v22, v9 offset:256
ds_read_b32 v23, v9 offset:384
s_waitcnt lgkmcnt(0)
v_add_f32 v20, v20, v21
v_add_f32 v22, v22, v23
v_add_f32 v20, v20, v22""")

def job_a(a):
    a(f"""s_lshr_b32 s24, s2, 2
s_and_b32 s25, s2, 3
s_lshl_b32 s30, s24, 5
s_add_u32 s31, s30, 1280""")
    def wloads():
        a(f"""v_and_b32 v15, 31, v0
v_lshrrev_b32 v16, 5, v0
v_mul_u32_u24 v17, {8*3840}, v16
s_lshl_b32 s37, s4, 5
v_add_u32 v18, s37, v15
v_lshl_add_u32 v17, v18, 2, v17
s_mul_i32 s38, s24, {16*3840}
s_mul_i32 s39, s25, 960
s_add_u32 s38, s38, s39""")
        for j in range(8):
            a(f"buffer_load_dword v{70+j}, v17, s[16:19], s38 offen")
            if j < 7: a(f"s_add_u32 s38, s38, 3840")
        return 8
    gemv(a, wloads)
    round_bf16(a, 21, 20)
    a("v_add_f32 v22, 1.0, v21")
    round_bf16(a, 22, 22)
    a(f"""v_and_b32 v9, 31, v2
v_cmp_lt_u32 vcc, 15, v9
v_cndmask_b32 v21, v21, v22, vcc
v_lshlrev_b32 v9, 2, v9
v_add_u32 v9, {L_GS}, v9
ds_write_b32 v9, v21
s_waitcnt lgkmcnt(0)
s_barrier
v_lshlrev_b32 v9, 5, v16
v_add_u32 v9, {L_GS}, v9
ds_read_b128 v[24:27], v9
ds_read_b128 v[28:31], v9 offset:16
ds_read_b128 v[32:35], v9 offset:64
ds_read_b128 v[36:39], v9 offset:80
s_waitcnt vmcnt(0)""")
    for j in range(8):
        a(f"""v_lshlrev_b32 v{40+j}, 16, v{70+j}
v_and_b32 v{48+j}, 0xffff0000, v{70+j}""")
    a("s_waitcnt lgkmcnt(0)")
    a("v_mul_f32 v56, v24, v40\nv_mul_f32 v57, v24, v48")
    for j in range(1, 8):
        a(f"v_fmac_f32 v56, v{24+j}, v{40+j}\nv_fmac_f32 v57, v{24+j}, v{48+j}")
    for j in range(8):
        a(f"v_mul_f32 v{40+j}, v{32+j}, v{40+j}\nv_mul_f32 v{48+j}, v{32+j}, v{48+j}")
    for i in range(4):
        a(f"v_cvt_pk_bf16_f32 v{60+i}, v{40+2*i}, v{41+2*i}\nv_cvt_pk_bf16_f32 v{64+i}, v{48+2*i}, v{49+2*i}")
    a(f"""v_mov_b32 v58, v56
v_mov_b32 v59, v57
s_nop 1
v_permlane32_swap_b32 v56, v58
v_permlane32_swap_b32 v57, v59
v_add_f32 v56, v56, v58
v_add_f32 v57, v57, v59""")
    a(f"""s_mul_i32 s37, s25, 15
s_lshl_b32 s38, s4, 1
s_add_u32 s37, s37, s38
v_lshrrev_b32 v9, 4, v15
v_add_u32 v9, s37, v9
v_lshrrev_b32 v10, 2, v9
s_mov_b32 s38, 163840
v_mul_lo_u32 v10, v10, s38
v_and_b32 v9, 3, v9
v_lshl_add_u32 v10, v9, 10, v10
v_lshl_add_u32 v10, v16, 9, v10
v_and_b32 v9, 15, v0
v_lshl_add_u32 v10, v9, 5, v10
s_lshl_b32 s38, s24, 12
s_add_u32 s38, s38, {WS['WQ']}
v_cmp_gt_u32 vcc, 240, v18
s_and_saveexec_b64 s[40:41], vcc
s_cbranch_execz L_k1_end
buffer_store_dwordx4 v[60:63], v10, s[12:15], s38 offen
buffer_store_dwordx4 v[64:67], v10, s[12:15], s38 offen offset:16
v_lshlrev_b32 v9, 3, v18
s_mul_i32 s38, s24, 7680
s_mul_i32 s39, s25, 1920
s_add_u32 s38, s38, s39
s_add_u32 s38, s38, {WS['V1P']}
v_cmp_gt_u32 vcc, 32, v0
s_and_saveexec_b64 s[42:43], vcc
s_cbranch_execz L_k1_end
buffer_store_dwordx2 v[56:57], v9, s[12:15], s38 offen
s_endpgm""")

def job_c(a):
    a(f"""s_sub_u32 s24, s2, {K1_C0}
s_lshl_b32 s30, s24, 6
s_add_u32 s30, s30, 2560
s_add_u32 s31, s30, 32""")
    gemv(a)
    round_bf16(a, 21, 20)
    a("v_add_f32 v22, 1.0, v21")
    round_bf16(a, 22, 22)
    a(f"""s_cmp_ge_u32 s24, 40
s_cselect_b32 s36, 1, 0
s_cmp_lt_u32 s24, 60
s_cselect_b32 s37, s36, 0
s_cmp_eq_u32 s37, 1
s_cbranch_scc0 L_k1_c_nog
v_mov_b32 v21, v22
L_k1_c_nog:
v_lshlrev_b32 v9, 2, v2
s_lshl_b32 s36, s24, 7
s_add_u32 s36, s36, {WS['MODF']}
v_cmp_gt_u32 vcc, 32, v2
s_and_saveexec_b64 s[40:41], vcc
s_cbranch_execz L_k1_end
buffer_store_dword v21, v9, s[12:15], s36 offen
s_endpgm""")

def row16_sum(a, v, t):
    for sh in (8, 4, 2, 1):
        a(f"""s_nop 1
v_add_f32_dpp v{v}, v{v}, v{v} row_ror:{sh} row_mask:0xf bank_mask:0xf""")

def job_b(a):
    a(f"""s_sub_u32 s24, s2, {K1_B0}
s_lshl_b32 s24, s24, 5
s_lshl_b32 s25, s4, 2
s_add_u32 s24, s24, s25
v_lshrrev_b32 v3, 4, v0
v_add_u32 v3, s24, v3
v_and_b32 v4, 15, v0
v_mul_u32_u24 v5, 1280, v3
v_lshl_add_u32 v5, v4, 4, v5""")
    for j in range(5):
        a(f"buffer_load_dwordx4 v[{10+4*j}:{13+4*j}], v5, s[16:19], 0 offen offset:{256*j}")
    a(f"""v_lshrrev_b32 v6, 7, v3
s_mov_b32 s25, 163840
v_mul_lo_u32 v6, v6, s25
v_bfe_u32 v7, v3, 5, 2
v_lshl_add_u32 v6, v7, 10, v6
v_and_b32 v7, 31, v3
v_lshl_add_u32 v6, v7, 4, v6
v_and_b32 v7, 1, v4
v_lshl_add_u32 v6, v7, 9, v6
v_lshrrev_b32 v7, 1, v4
v_lshl_add_u32 v6, v7, 12, v6
s_waitcnt vmcnt(0)""")
    for j in range(20):
        a(f"v_lshlrev_b32 v{40+2*j}, 16, v{10+j}\nv_and_b32 v{41+2*j}, 0xffff0000, v{10+j}")
    a("v_add_f32 v8, v40, v41")
    for j in range(2, 40): a(f"v_add_f32 v8, v8, v{40+j}")
    row16_sum(a, 8, 9)
    a(f"v_mul_f32 v8, {hexf(1.0/640)}, v8")
    for j in range(40): a(f"v_sub_f32 v{40+j}, v{40+j}, v8")
    a("v_mul_f32 v9, v40, v40")
    for j in range(1, 40): a(f"v_fmac_f32 v9, v{40+j}, v{40+j}")
    row16_sum(a, 9, 8)
    a(f"""v_mov_b32 v8, {hexf(1e-5)}
v_fmac_f32 v8, {hexf(1.0/640)}, v9
v_rsq_f32 v8, v8
s_nop 0""")
    for j in range(40): a(f"v_mul_f32 v{40+j}, v{40+j}, v8")
    for j in range(20): a(f"v_cvt_pk_bf16_f32 v{10+j}, v{40+2*j}, v{41+2*j}")
    for j in range(5):
        a(f"s_mov_b32 s25, {WS['XH'] + 32768*j}\nbuffer_store_dwordx4 v[{10+4*j}:{13+4*j}], v6, s[12:15], s25 offen")
    a("s_endpgm")

def job_e(a):
    e0 = K1_E0
    bounds = [e0, e0 + E_WO, e0 + E_WO + E_WD, e0 + E_WO + E_WD + E_WG]
    mats = [(KA_WO, 1280, 5, 100, 16, 20, WS['WO'], 0), (KA_WD, 1280, 5, 240, 16, 48, WS['WD'], 0),
            (KA_WG, 3072, 12, 240, 32, 40, WS['WGU'], 0), (KA_WU, 3072, 12, 240, 32, 40, WS['WGU'], 1)]
    sizes = [D*D*2, F*D*2, D*F*2, D*F*2]
    for mi, (ka, pitch, ncg, ntask, fmt, KS, dest, up) in enumerate(mats):
        nxt = f"L_k1_e{mi+1}"
        if mi < 3:
            a(f"s_cmp_ge_u32 s2, {bounds[mi+1]}\ns_cbranch_scc1 {nxt}")
        a(f"""s_load_dwordx2 s[26:27], s[0:1], {ka}
s_sub_u32 s24, s2, {bounds[mi]}
s_lshl_b32 s24, s24, 3
s_add_u32 s24, s24, s4
s_cmp_ge_u32 s24, {ntask}
s_cbranch_scc1 L_k1_end
s_waitcnt lgkmcnt(0)""")
        srd(a, 16, 26, sizes[mi])
        magic = (1 << 16) // ncg + 1
        a(f"""s_mul_i32 s25, s24, {magic}
s_lshr_b32 s25, s25, 16
s_mul_i32 s28, s25, {ncg}
s_sub_u32 s28, s24, s28
s_mul_i32 s29, s25, {32*pitch}
s_lshl_b32 s30, s28, 8
s_add_u32 s29, s29, s30
v_lshlrev_b32 v3, 2, v0""")
        for r in range(32):
            a(f"buffer_load_dword v{10+r}, v3, s[16:19], s29 offen")
            if r < 31: a(f"s_add_u32 s29, s29, {pitch}")
        per = 5 if fmt == 16 else 6
        mg = (1 << 16) // per + 1
        a(f"""s_lshl_b32 s30, s28, 3
v_lshrrev_b32 v4, 3, v0
v_add_u32 v4, s30, v4
v_mul_u32_u24 v5, {mg}, v4
v_lshrrev_b32 v5, 16, v5
v_mul_u32_u24 v6, {per}, v5
v_sub_u32 v6, v4, v6
s_mov_b32 s30, {KS*per*1024}
v_mul_lo_u32 v5, v5, s30
v_lshl_add_u32 v5, v6, 10, v5
v_and_b32 v6, 7, v0
v_lshl_add_u32 v5, v6, 5, v5""")
        if fmt == 16:
            a(f"s_mul_i32 s30, s25, {per*1024}\ns_add_u32 s30, s30, {dest}")
            offs = [g * 256 for g in range(4)]
        else:
            a(f"s_mul_i32 s30, s25, {2*per*1024}\ns_add_u32 s30, s30, {dest + 256*up}")
            offs = [(g // 2) * per * 1024 + (g % 2) * 512 for g in range(4)]
        a("s_mov_b32 s31, 0x05040100\ns_mov_b32 s33, 0x07060302")
        for g in range(4):
            a(f"s_waitcnt vmcnt({24-8*g})") if g == 0 else None
            if g == 0: pass
        for g in range(4):
            if g > 0: a(f"s_waitcnt vmcnt({24-8*g+2*g})")
            b = 10 + 8 * g
            for i in range(4):
                a(f"v_perm_b32 v{44+8*g+i}, v{b+2*i+1}, v{b+2*i}, s31")
                a(f"v_perm_b32 v{48+8*g+i}, v{b+2*i+1}, v{b+2*i}, s33")
            if offs[g] + 16 < 4096:
                a(f"buffer_store_dwordx4 v[{44+8*g}:{47+8*g}], v5, s[12:15], s30 offen offset:{offs[g]}")
                a(f"buffer_store_dwordx4 v[{48+8*g}:{51+8*g}], v5, s[12:15], s30 offen offset:{offs[g]+16}")
            else:
                o = offs[g]
                a(f"s_add_u32 s34, s30, {o}")
                a(f"buffer_store_dwordx4 v[{44+8*g}:{47+8*g}], v5, s[12:15], s34 offen")
                a(f"buffer_store_dwordx4 v[{48+8*g}:{51+8*g}], v5, s[12:15], s34 offen offset:16")
        a("s_endpgm")
        if mi < 3: a(f"{nxt}:")

def gen_k1(name):
    a = Asm()
    a(f"""s_cmp_ge_u32 s2, {K1_NWG}
s_cbranch_scc1 L_k1_end
s_load_dwordx2 s[6:7], s[0:1], {KA_WS}
s_load_dwordx2 s[24:25], s[0:1], {KA_WMOD}
s_load_dwordx2 s[26:27], s[0:1], {KA_C}
s_load_dwordx2 s[28:29], s[0:1], {KA_WQKV}
s_load_dwordx2 s[30:31], s[0:1], {KA_X}
v_mov_b32 v2, v0""")
    wave_lane(a)
    a("s_waitcnt lgkmcnt(0)")
    srd(a, 12, 6, WS_USED)
    srd(a, 8, 24, D * 6 * D * 2)
    srd(a, 20, 26, D * 2)
    a(f"""s_cmp_ge_u32 s2, {K1_E0}
s_cbranch_scc1 L_k1_e0
s_cmp_ge_u32 s2, {K1_B0}
s_cbranch_scc1 L_k1_b
s_cmp_ge_u32 s2, {K1_C0}
s_cbranch_scc1 L_k1_c""")
    srd(a, 16, 28, D * 3 * D * 2)
    job_a(a)
    a("L_k1_c:")
    job_c(a)
    a("L_k1_b:")
    srd(a, 16, 30, S * D * 2)
    job_b(a)
    a("L_k1_e0:")
    job_e(a)
    a("L_k1_end:\ns_endpgm")
    return a.lines, 80, K1_NWG, K1_LDS
```

```python
from common import *
from gemm import *
from k1 import wave_lane

K2_NS = 4
K2_VB = K2_NS * 32768
K2_LDS = K2_VB + 1024
QSCALE = LOG2E / math.sqrt(DH)

def k2_consumer(a, vform):
    ACC = 64; XF = [32, 48]; WF = [40, 56]
    a(f"""s_lshr_b32 s30, s4, 1
s_and_b32 s31, s4, 1
v_lshlrev_b32 v2, 4, v0
s_lshl_b32 s32, s30, 11
v_add_u32 v3, s32, v2
v_add_u32 v4, 0x10000, v3
s_lshl_b32 s32, s31, 11
s_add_u32 s32, s32, 16384
v_add_u32 v5, s32, v2
v_add_u32 v6, 0x10000, v5""")
    for r in range(64): a(f"v_mov_b32 v{ACC+r}, 0")
    def reads(n, b):
        st, ks = n // 4, n % 4
        slot = st % K2_NS
        va, vb = (3, 5) if slot < 2 else (4, 6)
        off = (slot % 2) * 32768 + ks * 4096
        for t in range(2): a(f"ds_read_b128 v[{XF[b]+4*t}:{XF[b]+4*t+3}], v{va} offset:{off + 1024*t}")
        for f in range(2): a(f"ds_read_b128 v[{WF[b]+4*f}:{WF[b]+4*f+3}], v{vb} offset:{off + 1024*f}")
    def mfmas(n, b):
        for t in range(2):
            for f in range(2):
                d = ACC + 16 * (2 * t + f)
                x = f"v[{XF[b]+4*t}:{XF[b]+4*t+3}]"; w = f"v[{WF[b]+4*f}:{WF[b]+4*f+3}]"
                A, B = (x, w) if vform else (w, x)
                a(f"v_mfma_f32_32x32x16_bf16 v[{d}:{d+15}], {A}, {B}, v[{d}:{d+15}]")
    consumer_loop(a, 10, 4, reads, mfmas, 4)
    a(f"""v_and_b32 v7, 31, v0
v_lshrrev_b32 v8, 5, v0
s_mul_i32 s33, s23, 128
s_lshl_b32 s34, s31, 6
s_add_u32 s33, s33, s34
s_lshl_b32 s35, s20, 2
s_lshl_b32 s36, s30, 1
s_add_u32 s35, s35, s36""")
    if not vform:
        a(f"""s_cmp_eq_u32 s22, 0
s_mov_b32 s45, {64*2560}
s_mov_b32 s46, 2560
s_mov_b32 s47, {WS['KV']}
s_cselect_b32 s40, {64*1280}, s45
s_cselect_b32 s41, 1280, s46
s_cselect_b32 s42, {WS['QI']}, s47
s_cselect_b32 s44, {hexf(QSCALE)}, 1.0
s_mul_i32 s36, s35, s41
s_add_u32 s42, s42, s36
s_add_u32 s43, s42, s41
v_lshlrev_b32 v9, 4, v7
v_lshlrev_b32 v10, 3, v7
v_lshlrev_b32 v11, 4, v8
s_lshl_b32 s36, s34, 2
s_add_u32 s36, s36, {K2_VB}
v_add_u32 v11, s36, v11""")
        for f in range(2):
            for i in range(4):
                k = 4 * f + i
                a(f"ds_read_b128 v[{32+4*k}:{35+4*k}], v11 offset:{(32*f+8*i)*4}")
            a("s_waitcnt lgkmcnt(0)")
        for f in range(2):
            for i in range(4):
                k = 4 * f + i
                a(f"ds_read_b128 v[{128+4*k}:{131+4*k}], v11 offset:{512+(32*f+8*i)*4}")
        for f in range(2):
            for i in range(4):
                k = 4 * f + i
                a(f"""v_lshlrev_b32 v12, 2, v8
s_add_u32 s36, s33, {32*f+8*i}
v_add_u32 v12, s36, v12
v_mul_u32_u24 v13, 3277, v12
v_lshrrev_b32 v13, 16, v13
v_mul_u32_u24 v14, 20, v13
v_sub_u32 v14, v12, v14
v_mul_lo_u32 v13, v13, s40
v_lshrrev_b32 v15, 3, v14
v_lshl_add_u32 v13, v15, 9, v13
v_and_b32 v15, 4, v14
v_lshl_add_u32 v13, v15, 1, v13
v_cmp_eq_u32 vcc, 16, v14
v_cndmask_b32 v15, v9, v10, vcc
v_add_u32 v{16+k}, v13, v15""")
        a("s_waitcnt lgkmcnt(0)")
        for r in range(32): a(f"v_add_f32 v{32+r}, v{32+r}, v{128+r}")
        for t in range(2):
            for f in range(2):
                d = ACC + 16 * (2 * t + f)
                for i in range(4):
                    k = 4 * f + i
                    for j in range(4):
                        a(f"v_fma_f32 v{d+4*i+j}, v{d+4*i+j}, s44, v{32+4*k+j}")
                    a(f"v_cvt_pk_bf16_f32 v{d+4*i}, v{d+4*i}, v{d+4*i+1}")
                    a(f"v_cvt_pk_bf16_f32 v{d+4*i+1}, v{d+4*i+2}, v{d+4*i+3}")
                    a(f"buffer_store_dwordx2 v[{d+4*i}:{d+4*i+1}], v{16+k}, s[12:15], s{42+t} offen")
    else:
        a(f"""s_mul_i32 s36, s35, 2560
s_add_u32 s42, s36, {WS['KV'] + 1280}
s_add_u32 s43, s42, 2560
v_lshlrev_b32 v11, 2, v7
s_lshl_b32 s36, s34, 2
s_add_u32 s36, s36, {K2_VB}
v_add_u32 v11, s36, v11
ds_read_b32 v32, v11
ds_read_b32 v33, v11 offset:128
ds_read_b32 v34, v11 offset:512
ds_read_b32 v35, v11 offset:640
s_mov_b32 s40, {64*2560}""")
        for f in range(2):
            a(f"""s_add_u32 s36, s33, {32*f}
v_add_u32 v12, s36, v7
v_mul_u32_u24 v13, 3277, v12
v_lshrrev_b32 v13, 16, v13
v_mul_u32_u24 v14, 20, v13
v_sub_u32 v14, v12, v14
v_mul_lo_u32 v13, v13, s40
v_lshl_add_u32 v13, v14, 4, v13
v_mul_u32_u24 v15, 320, v8
v_add_u32 v{16+f}, v13, v15""")
        a("s_waitcnt lgkmcnt(0)\nv_add_f32 v32, v32, v34\nv_add_f32 v33, v33, v35")
        for t in range(2):
            for f in range(2):
                d = ACC + 16 * (2 * t + f)
                for j in range(2):
                    for r in range(8): a(f"v_add_f32 v{d+8*j+r}, v{d+8*j+r}, v{32+f}")
                    for r in range(4): a(f"v_cvt_pk_bf16_f32 v{d+8*j+r}, v{d+8*j+2*r}, v{d+8*j+2*r+1}")
                    a(f"buffer_store_dwordx4 v[{d+8*j}:{d+8*j+3}], v{16+f}, s[12:15], s{42+t} offen offset:{640*j}")
    a("s_endpgm")

def k2_producer(a):
    a(f"""s_sub_u32 s30, s4, 4
v_lshlrev_b32 v2, 4, v0
s_mul_i32 s32, s20, 163840
s_lshl_b32 s33, s30, 12
s_add_u32 s32, s32, s33
s_add_u32 s32, s32, {WS['XH']}
s_mul_i32 s34, s21, 163840
s_add_u32 s34, s34, s33
s_add_u32 s34, s34, {WS['WQ']}
v_lshlrev_b32 v3, 2, v0
s_lshr_b32 s35, s30, 1
s_and_b32 s36, s30, 1
s_mul_i32 s37, s35, {20*7680}
s_lshl_b32 s38, s21, 9
s_add_u32 s37, s37, s38
s_lshl_b32 s38, s36, 8
s_add_u32 s37, s37, s38
s_add_u32 s37, s37, {WS['V1P']}""")
    for j in range(20):
        a(f"buffer_load_dword v{10+j}, v3, s[12:15], s37 offen")
        if j < 19: a("s_add_u32 s37, s37, 7680")
    def issue(s):
        slot = s % K2_NS
        a(f"s_add_u32 m0, s33, {slot*32768}\ns_add_u32 s38, s32, {s*16384}")
        for j in range(4): a(f"buffer_load_dwordx4 v2, s[12:15], s38 offen offset:{1024*j} lds")
        a(f"s_add_u32 m0, s33, {slot*32768+16384}\ns_add_u32 s38, s34, {s*16384}")
        for j in range(4): a(f"buffer_load_dwordx4 v2, s[12:15], s38 offen offset:{1024*j} lds")
    def pre_wait(n):
        a(f"s_waitcnt vmcnt({n})")
        for j in range(1, 20): a(f"v_add_f32 v10, v10, v{10+j}")
        a(f"""s_cmp_eq_u32 s22, 0
s_cselect_b32 s38, {hexf(QSCALE)}, 1.0
v_mul_f32 v10, s38, v10
s_lshl_b32 s38, s35, 9
s_lshl_b32 s39, s36, 8
s_add_u32 s38, s38, s39
s_add_u32 s38, s38, {K2_VB}
v_add_u32 v3, s38, v3
ds_write_b32 v3, v10
s_waitcnt lgkmcnt(0)""")
    producer_loop(a, 10, K2_NS, 8, issue, pre_wait)
    a("s_endpgm")

def k2_job_d(a):
    a(f"""v_lshlrev_b32 v3, 2, v0
s_lshl_b32 s30, s4, 8
v_add_u32 v3, s30, v3
s_mov_b32 s31, {WS['MODF'] + 640*4}
buffer_load_dword v10, v3, s[12:15], s31 offen
buffer_load_dword v11, v3, s[12:15], s31 offen offset:2048
buffer_load_dword v12, v3, s[12:15], s31 offen offset:2560
s_add_u32 s31, s31, 2048
buffer_load_dword v13, v3, s[12:15], s31 offen offset:2560
v_lshrrev_b32 v4, 1, v3
s_waitcnt vmcnt(0)
v_lshrrev_b32 v10, 16, v10
v_lshrrev_b32 v11, 16, v11
v_lshrrev_b32 v12, 16, v12
v_lshrrev_b32 v13, 16, v13
ds_write_b16 v4, v10
ds_write_b16 v4, v11 offset:1024
ds_write_b16 v4, v12 offset:2048
ds_write_b16 v4, v13 offset:3072
s_waitcnt lgkmcnt(0)
s_barrier
s_cmp_ge_u32 s4, 6
s_cbranch_scc1 L_k2_end
s_mul_i32 s30, s24, 6
s_add_u32 s30, s30, s4
s_mul_i32 s31, s24, {40*6*1024}
s_lshl_b32 s32, s4, 10
s_add_u32 s31, s31, s32
s_add_u32 s31, s31, {WS['WGU']}
v_lshlrev_b32 v2, 4, v0
v_and_b32 v5, 31, v0
v_lshrrev_b32 v6, 5, v0
v_cmp_eq_u32 vcc, 1, v5
v_mov_b32 v7, 2048
v_mov_b32 v8, 0
v_cndmask_b32 v7, v7, v8, vcc
v_lshl_add_u32 v7, v6, 4, v7""")
    for r in range(16): a(f"v_mov_b32 v{16+r}, 0")
    for blk in range(4):
        for j in range(10):
            a(f"buffer_load_dwordx4 v[{32+4*j}:{35+4*j}], v2, s[12:15], s31 offen\ns_add_u32 s31, s31, 6144")
        for j in range(10):
            a(f"ds_read_b128 v[{72+4*j}:{75+4*j}], v7 offset:{(blk*10+j)*32}")
        a("s_waitcnt lgkmcnt(0)")
        for j in range(10):
            a(f"s_waitcnt vmcnt({9-j})\nv_mfma_f32_32x32x16_bf16 v[16:31], v[{32+4*j}:{35+4*j}], v[{72+4*j}:{75+4*j}], v[16:31]")
    a(f"""v_cmp_eq_u32 vcc, 1, v5
v_mov_b32 v7, 0
v_mov_b32 v8, {3072*4}
v_cndmask_b32 v7, v7, v8, vcc
v_lshl_add_u32 v7, v6, 4, v7
s_lshl_b32 s30, s30, 7
s_add_u32 s30, s30, {WS['UV2']}
v_cmp_gt_u32 vcc, 2, v5
s_and_saveexec_b64 s[40:41], vcc
s_cbranch_execz L_k2_end
s_nop 7""")
    for i in range(4):
        a(f"buffer_store_dwordx4 v[{16+4*i}:{19+4*i}], v7, s[12:15], s30 offen offset:{32*i}")
    a("s_endpgm")

def gen_k2(name):
    a = Asm()
    a(f"""s_cmp_ge_u32 s2, 256
s_cbranch_scc1 L_k2_end
s_load_dwordx2 s[6:7], s[0:1], {KA_WS}""")
    wave_lane(a)
    a(f"""s_and_b32 s24, s2, 7
s_lshr_b32 s25, s2, 3
s_lshr_b32 s26, s24, 1
s_lshl_b32 s20, s26, 2
s_waitcnt lgkmcnt(0)""")
    srd(a, 12, 6, WS_USED)
    a(f"""s_bitcmp1_b32 s24, 0
s_cbranch_scc1 L_k2_odd
s_lshr_b32 s27, s25, 3
s_add_u32 s20, s20, s27
s_and_b32 s21, s25, 7
s_branch L_k2_go
L_k2_odd:
s_cmp_ge_u32 s25, 28
s_cbranch_scc1 L_k2_d
s_mul_i32 s27, s25, 9363
s_lshr_b32 s27, s27, 16
s_add_u32 s20, s20, s27
s_mul_i32 s27, s27, 7
s_sub_u32 s21, s25, s27
s_add_u32 s21, s21, 8
L_k2_go:
s_mul_i32 s22, s21, 13108
s_lshr_b32 s22, s22, 16
s_mul_i32 s23, s22, 5
s_sub_u32 s23, s21, s23
s_cmp_ge_u32 s4, 4
s_cbranch_scc1 L_k2_prod
s_cmp_eq_u32 s22, 2
s_cbranch_scc1 L_k2_v""")
    k2_consumer(a, False)
    a("L_k2_v:")
    k2_consumer(a, True)
    a("L_k2_prod:")
    k2_producer(a)
    a("L_k2_d:\ns_sub_u32 s24, s25, 28\ns_lshl_b32 s26, s26, 2\ns_add_u32 s24, s24, s26")
    k2_job_d(a)
    a("L_k2_end:\ns_endpgm")
    return a.lines, 160, 256, K2_LDS
```

```python
from common import *
from k1 import wave_lane

K3_LDS = 163840
S0, S1 = 16, 32
P = 48
O = 56
NM = 72
Q1, Q2 = 88, 92
K1B = [96, 100]; K2B = [104, 106]
V0B = [108, 112]; V1B = [116, 120]
AK1, AK2, AV = 2, 3, 4
SMASK = 44

def rd_k(a, buf, off):
    a(f"ds_read_b128 v[{K1B[buf]}:{K1B[buf]+3}], v{AK1} offset:{off}")
    a(f"ds_read_b64 v[{K2B[buf]}:{K2B[buf]+1}], v{AK2} offset:{off}")
def rd_v(a, buf, off):
    a(f"s_mov_b64 exec, s[{SMASK}:{SMASK+1}]")
    a(f"ds_read_b128 v[{V0B[buf]}:{V0B[buf]+3}], v{AV} offset:{off}")
    a(f"ds_read_b128 v[{V1B[buf]}:{V1B[buf]+3}], v{AV} offset:{off+640}")
    a("s_mov_b64 exec, -1")
def qk1(a, sdst, buf): a(f"v_mfma_f32_32x32x16_bf16 v[{sdst}:{sdst+15}], v[{K1B[buf]}:{K1B[buf]+3}], v[{Q1}:{Q1+3}], v[{NM}:{NM+15}]")
def qk2(a, sdst, buf): a(f"v_mfma_f32_32x32x8bf16_1k v[{sdst}:{sdst+15}], v[{K2B[buf]}:{K2B[buf]+1}], v[{Q2}:{Q2+1}], v[{sdst}:{sdst+15}]")
def pv0(a, buf): a(f"v_mfma_f32_32x32x16_bf16 v[{O}:{O+15}], v[{V0B[buf]}:{V0B[buf]+3}], v[{P}:{P+3}], v[{O}:{O+15}]")
def pv1(a, buf): a(f"v_mfma_f32_32x32x16_bf16 v[{O}:{O+15}], v[{V1B[buf]}:{V1B[buf]+3}], v[{P+4}:{P+7}], v[{O}:{O+15}]")
def ex(a, s, r): a(f"v_exp_f32 v{s+r}, v{s+r}")
def cv(a, s, c): a(f"v_cvt_pk_bf16_f32 v{P+c}, v{s+2*c}, v{s+2*c+1}")

def tile(a, par, off, first=False, do_qk=True, rd_kk=True, rd_vv=True):
    sc = S0 if par == 0 else S1
    sn = S1 if par == 0 else S0
    ex(a, sc, 0); ex(a, sc, 1)
    if not first: pv1(a, 1 - par)
    cv(a, sc, 0)
    if rd_vv: rd_v(a, 1 - par, off + 2560)
    ex(a, sc, 2); ex(a, sc, 3)
    nw = 2 if rd_vv else 0
    if do_qk: a(f"s_waitcnt lgkmcnt({nw})")
    if do_qk: qk1(a, sn, 1 - par)
    cv(a, sc, 1)
    ex(a, sc, 4); ex(a, sc, 5); cv(a, sc, 2); ex(a, sc, 6); ex(a, sc, 7)
    if do_qk: qk2(a, sn, 1 - par)
    cv(a, sc, 3)
    if rd_kk: rd_k(a, par, off + 5120)
    ex(a, sc, 8); ex(a, sc, 9); cv(a, sc, 4); ex(a, sc, 10); ex(a, sc, 11)
    if not do_qk: a("s_waitcnt lgkmcnt(0)")
    pv0(a, par)
    cv(a, sc, 5)
    ex(a, sc, 12); ex(a, sc, 13); cv(a, sc, 6); ex(a, sc, 14); ex(a, sc, 15); cv(a, sc, 7)

def bump(a, n):
    a(f"v_add_u32 v{AK1}, {n}, v{AK1}\nv_add_u32 v{AK2}, {n}, v{AK2}\nv_add_u32 v{AV}, {n}, v{AV}")

def addr_init(a):
    a(f"""v_lshlrev_b32 v{AK1}, 4, v0
v_and_b32 v5, 31, v0
v_lshrrev_b32 v6, 5, v0
v_lshlrev_b32 v{AK2}, 3, v5
v_add_u32 v{AK2}, 1024, v{AK2}
v_mul_u32_u24 v{AV}, 320, v6
v_lshl_add_u32 v{AV}, v5, 4, v{AV}
v_add_u32 v{AV}, 1280, v{AV}""")

def start_pipeline(a):
    for r in range(16): a(f"v_mov_b32 v{O+r}, 0")
    rd_k(a, 0, 0); rd_v(a, 0, 0); rd_k(a, 1, 2560)
    a("s_waitcnt lgkmcnt(4)")
    qk1(a, S0, 0); qk2(a, S0, 0)
    a("s_nop 15")

def body4(a, first=False, last=False):
    tile(a, 0, 0, first=first)
    tile(a, 1, 2560)
    tile(a, 0, 5120, rd_kk=not last)
    tile(a, 1, 7680, do_qk=not last, rd_kk=not last, rd_vv=not last)

def main_pass(a, tag, sync):
    def wait(n):
        if sync: a(f"s_waitcnt vmcnt({n})\ns_barrier")
    addr_init(a)
    wait(18)
    start_pipeline(a)
    body4(a, first=True); bump(a, 10240)
    segs = [(15, 2), (10, 4), (0, 8)] if sync else [(0, 14)]
    for k, (w, n) in enumerate(segs):
        wait(w)
        L = f"L_k3_{tag}_{k}"
        a(f"s_mov_b32 s30, {n}\n{L}:")
        body4(a); bump(a, 10240)
        a(f"s_sub_u32 s30, s30, 1\ns_cmp_lg_u32 s30, 0\ns_cbranch_scc1 {L}")
    body4(a, last=True)
    a("s_nop 1")
    pv1(a, 1)

def max_pass(a):
    addr_init(a)
    for r in range(16): a(f"v_mov_b32 v{NM+r}, 0")
    a(f"""v_mov_b32 v7, 0xff800000
s_mov_b32 s30, 64
L_k3_max:""")
    rd_k(a, 0, 0)
    a("s_waitcnt lgkmcnt(0)")
    qk1(a, S0, 0); qk2(a, S0, 0)
    a("s_nop 15")
    for r in range(0, 16, 2): a(f"v_max3_f32 v7, v{S0+r}, v{S0+r+1}, v7")
    bump(a, 2560)
    a(f"""s_sub_u32 s30, s30, 1
s_cmp_lg_u32 s30, 0
s_cbranch_scc1 L_k3_max
v_mov_b32 v8, v7
s_nop 1
v_permlane32_swap_b32 v7, v8
v_max_f32 v7, v7, v8
v_sub_f32 v7, 0, v7""")
    for r in range(16): a(f"v_mov_b32 v{NM+r}, v7")

def gen_k3(name):
    a = Asm()
    a(f"""s_cmp_ge_u32 s2, 256
s_cbranch_scc1 L_k3_end
s_load_dwordx2 s[6:7], s[0:1], {KA_WS}""")
    wave_lane(a)
    a(f"""s_and_b32 s24, s2, 7
s_lshr_b32 s25, s2, 3
s_lshr_b32 s26, s25, 3
s_lshl_b32 s20, s24, 2
s_add_u32 s20, s20, s26
s_and_b32 s21, s25, 7
s_mov_b32 s{SMASK}, 0x000fffff
s_mov_b32 s{SMASK+1}, 0x000fffff
s_waitcnt lgkmcnt(0)""")
    srd(a, 12, 6, WS_USED)
    a(f"""s_lshl_b32 s22, s21, 3
s_add_u32 s22, s22, s4
s_mul_i32 s27, s20, {64*1280}
s_mul_i32 s28, s22, 1280
s_add_u32 s27, s27, s28
s_add_u32 s27, s27, {WS['QI']}
v_lshlrev_b32 v{AK1}, 4, v0
v_and_b32 v5, 31, v0
v_lshlrev_b32 v6, 3, v5
buffer_load_dwordx4 v[{Q1}:{Q1+3}], v{AK1}, s[12:15], s27 offen
buffer_load_dwordx2 v[{Q2}:{Q2+1}], v6, s[12:15], s27 offen offset:1024
s_mul_i32 s27, s20, {64*2560}
s_lshl_b32 s28, s4, 10
s_add_u32 s27, s27, s28
s_add_u32 s27, s27, {WS['KV']}
s_mov_b32 m0, s28""")
    for i in range(20):
        a(f"buffer_load_dwordx4 v{AK1}, s[12:15], s27 offen lds")
        if i < 19: a("s_add_u32 s27, s27, 8192\ns_add_u32 m0, m0, 8192")
    for b in V0B + V1B:
        for r in range(4): a(f"v_mov_b32 v{b+r}, 0x3f803f80")
    for r in range(16): a(f"v_mov_b32 v{NM+r}, 0")
    a(f"""s_waitcnt vmcnt(20)
v_cmp_gt_u32 vcc, 32, v0
v_cndmask_b32 v{Q2}, 0, v{Q2}, vcc
v_cndmask_b32 v{Q2+1}, 0, v{Q2+1}, vcc""")
    main_pass(a, "a", True)
    a(f"""s_nop 15
v_cmp_gt_f32 vcc, {hexf(2.0**60)}, v{O+12}
s_mov_b64 s[32:33], vcc
v_cmp_lt_f32 vcc, {hexf(2.0**-60)}, v{O+12}
s_and_b64 s[32:33], s[32:33], vcc
s_cmp_eq_u64 s[32:33], -1
s_cbranch_scc1 L_k3_fin""")
    max_pass(a)
    main_pass(a, "b", False)
    a("s_nop 15")
    a("L_k3_fin:")
    a(f"""v_rcp_f32 v7, v{O+12}
v_and_b32 v5, 31, v0
v_lshrrev_b32 v6, 5, v0
s_lshl_b32 s27, s22, 5
v_add_u32 v8, s27, v5
v_lshrrev_b32 v9, 6, v8
s_mov_b32 s28, {20*4096}
v_mul_lo_u32 v9, v9, s28
v_bfe_u32 v10, v8, 4, 2
v_lshl_add_u32 v9, v10, 10, v9
v_and_b32 v10, 15, v8
v_lshl_add_u32 v9, v10, 4, v9
s_mul_i32 s28, s20, 5""")
    for r in range(12): a(f"v_mul_f32 v{O+r}, v{O+r}, v7")
    for i in range(3):
        a(f"""v_add_u32 v10, s28, v6
v_add_u32 v10, {2*i}, v10
v_and_b32 v11, 1, v10
v_lshl_add_u32 v12, v11, 3, v9
v_bfe_u32 v11, v10, 1, 2
v_lshl_add_u32 v12, v11, 8, v12
v_lshrrev_b32 v11, 3, v10
v_lshl_add_u32 v12, v11, 12, v12
v_cvt_pk_bf16_f32 v{O+4*i}, v{O+4*i}, v{O+4*i+1}
v_cvt_pk_bf16_f32 v{O+4*i+1}, v{O+4*i+2}, v{O+4*i+3}
s_mov_b32 s29, {WS['OI']}""")
        if i == 2: a("s_mov_b32 exec_hi, 0")
        a(f"buffer_store_dwordx2 v[{O+4*i}:{O+4*i+1}], v12, s[12:15], s29 offen")
    a("L_k3_end:\ns_endpgm")
    return a.lines, 128, 256, K3_LDS
```

```python
from common import *
from gemm import *
from k1 import wave_lane

NS46 = 8
STAGE46 = 18432
K46_LDS = NS46 * STAGE46

def tile_ids(a):
    a(f"""s_and_b32 s24, s2, 7
s_lshr_b32 s25, s2, 3
s_lshl_b32 s20, s24, 2
s_lshr_b32 s26, s25, 3
s_add_u32 s20, s20, s26
s_and_b32 s21, s25, 7""")

def producer46(a, KS, xoff, woff):
    T = KS // 2
    a(f"""s_sub_u32 s30, s4, 4
v_lshlrev_b32 v2, 4, v0
s_cmp_ge_u32 s30, 2
s_cbranch_scc1 L_pw_{KS}""")
    a(f"""s_mul_i32 s32, s20, {KS*4096}
s_lshl_b32 s33, s30, 12
s_add_u32 s32, s32, s33
s_add_u32 s32, s32, {xoff}""")
    def issue_x(s):
        a(f"s_add_u32 m0, s33, {(s % NS46)*STAGE46}\ns_add_u32 s38, s32, {s*8192}")
        for j in range(4): a(f"buffer_load_dwordx4 v2, s[12:15], s38 offen offset:{1024*j} lds")
    producer_loop(a, T, NS46, 4, issue_x)
    a(f"s_endpgm\nL_pw_{KS}:")
    a(f"""s_sub_u32 s30, s30, 2
s_mul_i32 s32, s21, {KS*5120}
s_mul_i32 s33, s30, 5120
s_add_u32 s32, s32, s33
s_add_u32 s32, s32, {woff}
s_add_u32 s33, s33, 8192""")
    def issue_w(s):
        a(f"s_add_u32 m0, s33, {(s % NS46)*STAGE46}\ns_add_u32 s38, s32, {s*10240}")
        for j in range(4): a(f"buffer_load_dwordx4 v2, s[12:15], s38 offen offset:{1024*j} lds")
        a(f"s_add_u32 m0, m0, 4096\ns_add_u32 s38, s38, 4096\nbuffer_load_dwordx4 v2, s[12:15], s38 offen lds")
    producer_loop(a, T, NS46, 5, issue_w)
    a("s_endpgm")

ACC = 64
def consumer46(a, KS, pre=None):
    T = KS // 2
    XF = [32, 56]; WF = [36, 60]
    XF = [24, 96]; WF = [28, 100]
    a(f"""v_lshlrev_b32 v2, 4, v0
s_lshl_b32 s32, s4, 10
v_add_u32 v3, s32, v2
v_add_u32 v4, 8192, v2
v_add_u32 v5, {4*STAGE46}, v3
v_add_u32 v6, {4*STAGE46}, v4""")
    for r in range(20): a(f"v_mov_b32 v{ACC+r}, 0")
    if pre: pre()
    def reads(n, b):
        st, ks = n // 2, n % 2
        slot = st % NS46
        vx, vw = (3, 4) if slot < 4 else (5, 6)
        base = (slot % 4) * STAGE46
        a(f"ds_read_b128 v[{XF[b]}:{XF[b]+3}], v{vx} offset:{base + ks*4096}")
        for f in range(5): a(f"ds_read_b128 v[{WF[b]+4*f}:{WF[b]+4*f+3}], v{vw} offset:{base + ks*5120 + 1024*f}")
    def mfmas(n, b):
        for f in range(5):
            d = ACC + 4 * f
            a(f"v_mfma_f32_16x16x32_bf16 v[{d}:{d+3}], v[{WF[b]+4*f}:{WF[b]+4*f+3}], v[{XF[b]}:{XF[b]+3}], v[{d}:{d+3}]")
    consumer_loop(a, T, 2, reads, mfmas, 6)

def swap_sum(a, v, t):
    a(f"""v_mov_b32 v{t}, v{v}
s_nop 1
v_permlane32_swap_b32 v{v}, v{t}
v_add_f32 v{v}, v{v}, v{t}
v_mov_b32 v{t}, v{v}
s_nop 1
v_permlane16_swap_b32 v{v}, v{t}
v_add_f32 v{v}, v{v}, v{t}""")

def gen_k4(name):
    a = Asm()
    a(f"""s_cmp_ge_u32 s2, 256
s_cbranch_scc1 L_k4_end
s_load_dwordx2 s[6:7], s[0:1], {KA_WS}
s_load_dwordx2 s[8:9], s[0:1], {KA_X}""")
    wave_lane(a)
    tile_ids(a)
    a("s_waitcnt lgkmcnt(0)")
    srd(a, 12, 6, WS_USED)
    srd(a, 16, 8, S * D * 2)
    a("s_cmp_ge_u32 s4, 4\ns_cbranch_scc1 L_k4_prod")
    def pre():
        a(f"""v_and_b32 v7, 15, v0
v_lshrrev_b32 v8, 4, v0
s_lshl_b32 s33, s20, 6
s_lshl_b32 s34, s4, 4
s_add_u32 s33, s33, s34
v_add_u32 v9, s33, v7
v_mul_u32_u24 v10, 1280, v9
v_lshl_add_u32 v10, v8, 3, v10
s_mul_i32 s34, s21, 160
v_lshlrev_b32 v11, 4, v8
s_mul_i32 s35, s21, 320
s_add_u32 s35, s35, {WS['MODF']}
s_add_u32 s36, s35, {1280*4}""")
        for f in range(5):
            a(f"buffer_load_dwordx2 v[{120+2*f}:{121+2*f}], v10, s[16:19], s34 offen offset:{32*f}")
            a(f"buffer_load_dwordx4 v[{130+4*f}:{133+4*f}], v11, s[12:15], s35 offen offset:{64*f}")
            a(f"buffer_load_dwordx4 v[{150+4*f}:{153+4*f}], v11, s[12:15], s36 offen offset:{64*f}")
    consumer46(a, 20, pre)
    a("s_waitcnt vmcnt(0)\nv_mov_b32 v12, 0\nv_mov_b32 v13, 0")
    for f in range(5):
        d = ACC + 4 * f
        a(f"""v_lshlrev_b32 v14, 16, v{120+2*f}
v_and_b32 v15, 0xffff0000, v{120+2*f}
v_lshlrev_b32 v16, 16, v{121+2*f}
v_and_b32 v17, 0xffff0000, v{121+2*f}""")
        for j in range(4): a(f"v_fma_f32 v{d+j}, v{d+j}, v{130+4*f+j}, v{14+j}")
        a(f"""v_cvt_pk_bf16_f32 v{120+2*f}, v{d}, v{d+1}
v_cvt_pk_bf16_f32 v{121+2*f}, v{d+2}, v{d+3}
v_lshlrev_b32 v14, 16, v{120+2*f}
v_and_b32 v15, 0xffff0000, v{120+2*f}
v_lshlrev_b32 v16, 16, v{121+2*f}
v_and_b32 v17, 0xffff0000, v{121+2*f}""")
        for j in range(4): a(f"v_add_f32 v12, v12, v{14+j}\nv_fmac_f32 v13, v{14+j}, v{14+j}")
        for j in range(4): a(f"v_mul_f32 v{14+j}, v{14+j}, v{150+4*f+j}")
        a(f"v_cvt_pk_bf16_f32 v{d}, v14, v15\nv_cvt_pk_bf16_f32 v{d+1}, v16, v17")
    a(f"""s_lshl_b32 s34, s20, 3
s_add_u32 s34, s34, s21
s_mul_i32 s34, s34, 10240
s_mul_i32 s35, s4, 2560
s_add_u32 s34, s34, s35
s_add_u32 s34, s34, {WS['X1']}
v_lshlrev_b32 v18, 3, v0""")
    for f in range(5):
        a(f"buffer_store_dwordx2 v[{120+2*f}:{121+2*f}], v18, s[12:15], s34 offen offset:{512*f}")
    a(f"""v_lshrrev_b32 v19, 7, v9
s_mov_b32 s35, 163840
v_mul_lo_u32 v19, v19, s35
v_bfe_u32 v20, v9, 5, 2
v_lshl_add_u32 v19, v20, 10, v19
v_and_b32 v20, 31, v9
v_lshl_add_u32 v19, v20, 4, v19
v_and_b32 v20, 1, v8
v_lshl_add_u32 v19, v20, 3, v19
v_lshrrev_b32 v20, 1, v8
v_lshl_add_u32 v19, v20, 9, v19
s_mul_i32 s35, s21, {5*4096}
s_add_u32 s35, s35, {WS['X1G']}""")
    for f in range(5):
        d = ACC + 4 * f
        a(f"buffer_store_dwordx2 v[{d}:{d+1}], v19, s[12:15], s35 offen")
        if f < 4: a("s_add_u32 s35, s35, 4096")
    swap_sum(a, 12, 14)
    swap_sum(a, 13, 14)
    a(f"""v_lshlrev_b32 v20, 6, v9
s_lshl_b32 s35, s21, 3
s_add_u32 s35, s35, {WS['ST2']}
s_mov_b32 exec_lo, 0xffff
s_mov_b32 exec_hi, 0
buffer_store_dwordx2 v[12:13], v20, s[12:15], s35 offen
s_endpgm
L_k4_prod:""")
    producer46(a, 20, WS['OI'], WS['WO'])
    a("L_k4_end:\ns_endpgm")
    return a.lines, 176, 256, K46_LDS

def gen_k6(name):
    a = Asm()
    a(f"""s_cmp_ge_u32 s2, 256
s_cbranch_scc1 L_k6_end
s_load_dwordx2 s[6:7], s[0:1], {KA_WS}
s_load_dwordx2 s[8:9], s[0:1], {KA_OUT}""")
    wave_lane(a)
    tile_ids(a)
    a("s_waitcnt lgkmcnt(0)")
    srd(a, 12, 6, WS_USED)
    srd(a, 16, 8, S * D * 2)
    a("s_cmp_ge_u32 s4, 4\ns_cbranch_scc1 L_k6_prod")
    def pre():
        a(f"""v_and_b32 v7, 15, v0
v_lshrrev_b32 v8, 4, v0
s_lshl_b32 s34, s20, 3
s_add_u32 s34, s34, s21
s_mul_i32 s34, s34, 10240
s_mul_i32 s35, s4, 2560
s_add_u32 s34, s34, s35
s_add_u32 s34, s34, {WS['X1']}
v_lshlrev_b32 v18, 3, v0
v_lshlrev_b32 v11, 4, v8
s_mul_i32 s35, s21, 320
s_add_u32 s35, s35, {WS['MODF'] + 1920*4}""")
        for f in range(5):
            a(f"buffer_load_dwordx2 v[{120+2*f}:{121+2*f}], v18, s[12:15], s34 offen offset:{512*f}")
            a(f"buffer_load_dwordx4 v[{130+4*f}:{133+4*f}], v11, s[12:15], s35 offen offset:{64*f}")
    consumer46(a, 48, pre)
    a(f"""s_waitcnt vmcnt(0)
s_lshl_b32 s33, s20, 6
s_lshl_b32 s34, s4, 4
s_add_u32 s33, s33, s34
v_add_u32 v9, s33, v7
v_mul_u32_u24 v10, 1280, v9
v_lshl_add_u32 v10, v8, 3, v10
s_mul_i32 s34, s21, 160""")
    for f in range(5):
        d = ACC + 4 * f
        a(f"""v_lshlrev_b32 v14, 16, v{120+2*f}
v_and_b32 v15, 0xffff0000, v{120+2*f}
v_lshlrev_b32 v16, 16, v{121+2*f}
v_and_b32 v17, 0xffff0000, v{121+2*f}""")
        for j in range(4): a(f"v_fma_f32 v{d+j}, v{d+j}, v{130+4*f+j}, v{14+j}")
        a(f"""v_cvt_pk_bf16_f32 v{d}, v{d}, v{d+1}
v_cvt_pk_bf16_f32 v{d+1}, v{d+2}, v{d+3}
buffer_store_dwordx2 v[{d}:{d+1}], v10, s[16:19], s34 offen offset:{32*f}""")
    a("s_endpgm\nL_k6_prod:")
    producer46(a, 48, WS['ACT'], WS['WD'])
    a("L_k6_end:\ns_endpgm")
    return a.lines, 176, 256, K46_LDS
```

```python
from common import *
from gemm import *
from k1 import wave_lane

K5_NS = 4
K5_STAGE = 40960
K5_LDS = K5_NS * K5_STAGE
GA = -2.0 * LOG2E * math.sqrt(2.0 / math.pi)
GB = GA * 0.044715

def gen_k5(name):
    a = Asm()
    a(f"""s_cmp_ge_u32 s2, 256
s_cbranch_scc1 L_k5_end
s_load_dwordx2 s[6:7], s[0:1], {KA_WS}""")
    wave_lane(a)
    a(f"""s_and_b32 s24, s2, 7
s_lshr_b32 s25, s2, 3
s_lshl_b32 s20, s24, 1
s_lshr_b32 s26, s25, 4
s_add_u32 s20, s20, s26
s_and_b32 s21, s25, 15
s_waitcnt lgkmcnt(0)""")
    srd(a, 12, 6, WS_USED)
    a("s_cmp_ge_u32 s4, 4\ns_cbranch_scc1 L_k5_prod")
    ACC = 128; XF = [8, 28]; WF = [16, 36]
    a(f"""s_lshr_b32 s30, s4, 1
s_and_b32 s31, s4, 1
v_and_b32 v6, 31, v0
v_lshrrev_b32 v7, 5, v0""")
    a(f"""s_lshl_b32 s32, s20, 7
s_lshl_b32 s33, s30, 6
s_add_u32 s32, s32, s33
v_add_u32 v48, s32, v6
v_lshlrev_b32 v49, 6, v48
s_mov_b32 s33, {WS['ST2']}""")
    for t in range(2):
        for j in range(4):
            a(f"buffer_load_dwordx4 v[{56+16*t+4*j}:{59+16*t+4*j}], v49, s[12:15], s33 offen offset:{2048*t+16*j}")
    a(f"""s_mul_i32 s33, s21, 6
s_mul_i32 s34, s31, 3
s_add_u32 s33, s33, s34
s_lshl_b32 s33, s33, 7
s_add_u32 s33, s33, {WS['UV2']}
s_add_u32 s34, s33, {3072*4}
v_lshlrev_b32 v50, 4, v7""")
    a(f"""v_lshlrev_b32 v2, 4, v0
s_lshl_b32 s35, s30, 11
v_add_u32 v3, s35, v2
v_add_u32 v4, {2*K5_STAGE}, v3
s_mul_i32 s35, s31, 3072
s_add_u32 s35, s35, 16384
v_add_u32 v5, s35, v2
v_add_u32 v51, {2*K5_STAGE}, v5""")
    a("s_waitcnt vmcnt(0)")
    for t in range(2):
        b = 56 + 16 * t
        a(f"""v_add_f32 v{b}, v{b}, v{b+2}
v_add_f32 v{b+1}, v{b+1}, v{b+3}""")
        for j in range(2, 8):
            a(f"v_add_f32 v{b}, v{b}, v{b+2*j}\nv_add_f32 v{b+1}, v{b+1}, v{b+2*j+1}")
        a(f"""v_mul_f32 v{52+t}, {hexf(1.0/640)}, v{b}
v_mul_f32 v{b+1}, {hexf(1.0/640)}, v{b+1}
v_fma_f32 v{b+1}, -v{52+t}, v{52+t}, v{b+1}
v_max_f32 v{b+1}, 0, v{b+1}
v_add_f32 v{b+1}, {hexf(1e-5)}, v{b+1}
v_sqrt_f32 v{54+t}, v{b+1}
v_rsq_f32 v{88+t}, v{b+1}""")
    for f in range(3):
        for i in range(4):
            a(f"buffer_load_dwordx4 v[{56+4*i}:{59+4*i}], v50, s[12:15], s33 offen offset:{128*f+32*i}")
            a(f"buffer_load_dwordx4 v[{72+4*i}:{75+4*i}], v50, s[12:15], s34 offen offset:{128*f+32*i}")
        a("s_waitcnt vmcnt(0)")
        for t in range(2):
            d = ACC + 16 * (3 * t + f)
            for r in range(16):
                a(f"v_mul_f32 v{d+r}, v{72+r}, v{54+t}")
                a(f"v_fma_f32 v{d+r}, -v{52+t}, v{56+r}, v{d+r}")
    def reads(n, b):
        st, ks = n // 4, n % 4
        slot = st % K5_NS
        vx, vw = (3, 5) if slot < 2 else (4, 51)
        base = (slot % 2) * K5_STAGE
        for t in range(2): a(f"ds_read_b128 v[{XF[b]+4*t}:{XF[b]+4*t+3}], v{vx} offset:{base + ks*4096 + 1024*t}")
        for f in range(3): a(f"ds_read_b128 v[{WF[b]+4*f}:{WF[b]+4*f+3}], v{vw} offset:{base + ks*6144 + 1024*f}")
    def mfmas(n, b):
        for t in range(2):
            for f in range(3):
                d = ACC + 16 * (3 * t + f)
                a(f"v_mfma_f32_32x32x16_bf16 v[{d}:{d+15}], v[{WF[b]+4*f}:{WF[b]+4*f+3}], v[{XF[b]+4*t}:{XF[b]+4*t+3}], v[{d}:{d+15}]")
    consumer_loop(a, 10, 4, reads, mfmas, 5)
    a(f"""s_mov_b32 s36, {hexf(GA)}
s_mov_b32 s37, {hexf(GB)}
v_mov_b32 v15, s36
v_lshrrev_b32 v9, 6, v48
s_mov_b32 s35, {48*4096}
v_mul_lo_u32 v9, v9, s35""")
    for t in range(2):
        a(f"""v_add_u32 v10, {32*t}, v48
v_bfe_u32 v11, v10, 4, 2
v_lshl_add_u32 v12, v11, 10, v9
v_and_b32 v11, 15, v10
v_lshl_add_u32 v12, v11, 4, v12
v_lshl_add_u32 v12, v7, 3, v12""")
        for f in range(3):
            d = ACC + 16 * (3 * t + f)
            for r in range(16): a(f"v_mul_f32 v{d+r}, v{d+r}, v{88+t}")
            for r in range(8):
                g, u = d + r, d + 8 + r
                a(f"""v_mul_f32 v13, v{g}, v{g}
v_fma_f32 v13, v13, s37, v15
v_mul_f32 v13, v13, v{g}
v_exp_f32 v13, v13
v_mul_f32 v{u}, v{u}, v{g}
v_add_f32 v13, 1.0, v13
v_rcp_f32 v13, v13
s_nop 0
v_mul_f32 v{g}, v{u}, v13""")
            for i in range(2):
                a(f"""v_cvt_pk_bf16_f32 v{d+4*i}, v{d+4*i}, v{d+4*i+1}
v_cvt_pk_bf16_f32 v{d+4*i+1}, v{d+4*i+2}, v{d+4*i+3}
s_mul_i32 s38, s21, 12
s_mul_i32 s39, s31, 6
s_add_u32 s38, s38, s39
s_add_u32 s38, s38, {2*f+i}
s_lshr_b32 s39, s38, 2
s_lshl_b32 s39, s39, 12
s_and_b32 s38, s38, 3
s_lshl_b32 s38, s38, 8
s_add_u32 s38, s38, s39
s_add_u32 s38, s38, {WS['ACT']}
buffer_store_dwordx2 v[{d+4*i}:{d+4*i+1}], v12, s[12:15], s38 offen""")
    a("s_endpgm\nL_k5_prod:")
    a(f"""s_sub_u32 s30, s4, 4
v_lshlrev_b32 v2, 4, v0
s_mul_i32 s32, s20, 163840
s_lshl_b32 s33, s30, 12
s_add_u32 s32, s32, s33
s_add_u32 s32, s32, {WS['X1G']}
s_mul_i32 s34, s21, {40*6144}
s_mul_i32 s35, s30, 6144
s_add_u32 s34, s34, s35
s_add_u32 s34, s34, {WS['WGU']}
s_add_u32 s35, s35, 16384""")
    def issue(s):
        slot = s % K5_NS
        a(f"s_add_u32 m0, s33, {slot*K5_STAGE}\ns_add_u32 s38, s32, {s*16384}")
        for j in range(4): a(f"buffer_load_dwordx4 v2, s[12:15], s38 offen offset:{1024*j} lds")
        a(f"s_add_u32 m0, s35, {slot*K5_STAGE}\ns_add_u32 s38, s34, {s*24576}")
        for j in range(4): a(f"buffer_load_dwordx4 v2, s[12:15], s38 offen offset:{1024*j} lds")
        a(f"s_add_u32 m0, m0, 4096\ns_add_u32 s38, s38, 4096")
        for j in range(2): a(f"buffer_load_dwordx4 v2, s[12:15], s38 offen offset:{1024*j} lds")
    producer_loop(a, 10, K5_NS, 10, issue)
    a("L_k5_end:\ns_endpgm")
    return a.lines, 224, 256, K5_LDS
```

```python
import sys
from common import *
import hazard
from k1 import gen_k1
from k2 import gen_k2
from k3 import gen_k3
from k46 import gen_k4, gen_k6
from k5 import gen_k5

HEADER = open("adaLN_cond__mha_block__geglu_ffn__prompt.s.ref").read().split("; Override launch")[0] if False else None

def build(kernels, extra_launch=()):
    out = []
    body = []
    for name, g in kernels:
        lines, vg, nwg, lds = g(name)
        out.append(f"; @launch kernel={name} grid=({nwg},1,1) block=(512,1,1) lds={lds}")
        body += kernel_head(name) + hazard.pad(lines) + kernel_desc(name, vg)
    out += list(extra_launch)
    out.append('.amdgcn_target "amdgcn-amd-amdhsa--gfx950"')
    return "\n".join(out + body) + "\n"

ALL = [("k1_prep_kernel", gen_k1), ("k2_qkv_kernel", gen_k2), ("k3_attn_kernel", gen_k3),
       ("k4_wo_kernel", gen_k4), ("k5_gu_kernel", gen_k5), ("k6_down_kernel", gen_k6)]
if __name__ == "__main__":
    dst = sys.argv[1] if len(sys.argv) > 1 else "adaLN_cond__mha_block__geglu_ffn__prompt.s"
    open(dst, "w").write(build(ALL))
    print("wrote", dst)
```
